```python
import torch

def _softmax(x, axis=-1):
    return torch.softmax(x, dim=axis)
def _gelu(x):
    return torch.nn.functional.gelu(x, approximate="tanh")
def _silu(x):
    return torch.nn.functional.silu(x)
def _sigmoid(x):
    return torch.sigmoid(x)
def _layernorm(x, axis=-1, eps=1e-5):
    m = x.mean(dim=axis, keepdim=True)
    v = x.var(dim=axis, keepdim=True, unbiased=False)
    return (x - m) / torch.sqrt(v + eps)
def _scatter_add(tgt, idx, src, axis=0):
    return tgt.clone().index_add_(axis, idx, src)
def _segment_sum(src, seg, n):
    out = torch.zeros((n,) + src.shape[1:], dtype=src.dtype)
    return out.index_add_(0, seg, src)
def _pad(x, pw):
    flat = tuple(v for pair in reversed(pw) for v in pair)
    return torch.nn.functional.pad(x, flat)

kernel_name = 'concat_heads__grouped_kv_mqa__spectral_fnet__prompt'

def setup_inputs():

    _w = (lambda a: (lambda t: t.to(torch.bfloat16) if t.is_floating_point() else t)(torch.as_tensor(a)))
    def _A_setup():
        B, S, D, H = 1, 2048, 448, 16
        Dh = D // H
        return {
            "x": _w((lambda *s: torch.randn(*s, dtype=torch.bfloat16) * 0.05)(B, S, D)),
            "wq": _w((lambda *s: torch.randn(*s, dtype=torch.bfloat16) * 3.2)(D, H * Dh)),
            "wk": _w((lambda *s: torch.randn(*s, dtype=torch.bfloat16) * 3.2)(D, Dh)),
            "wv": _w((lambda *s: torch.randn(*s, dtype=torch.bfloat16) * 0.4)(D, Dh)),
            "wo": _w((lambda *s: torch.randn(*s, dtype=torch.bfloat16) * 0.4)(H * Dh, D)),
        }
    _A_in = _A_setup()

    def _B_setup():
        B, S, D = 1, 2048, 448
        ns = torch.arange(S)[:, None] * torch.arange(S)[None, :]
        nd = torch.arange(D)[:, None] * torch.arange(D)[None, :]
        Ws_re = torch.cos(-2.0 * torch.pi * ns / S).to(float)
        Ws_im = torch.sin(-2.0 * torch.pi * ns / S).to(float)
        Wd_re = torch.cos(-2.0 * torch.pi * nd / D).to(float)
        Wd_im = torch.sin(-2.0 * torch.pi * nd / D).to(float)
        return {
            "x": _w((lambda *s: torch.randn(*s, dtype=torch.bfloat16) * 0.05)(B, S, D)),
            "dft_seq_re": _w(Ws_re),
            "dft_seq_im": _w(Ws_im),
            "dft_hid_re": _w(Wd_re),
            "dft_hid_im": _w(Wd_im),
        }
    _B_in = _B_setup()

    return {
        "A_x": _A_in["x"],
        "A_wq": _A_in["wq"],
        "A_wk": _A_in["wk"],
        "A_wv": _A_in["wv"],
        "A_wo": _A_in["wo"],
        "B_x": _B_in["x"],
        "B_dft_seq_re": _B_in["dft_seq_re"],
        "B_dft_seq_im": _B_in["dft_seq_im"],
        "B_dft_hid_re": _B_in["dft_hid_re"],
        "B_dft_hid_im": _B_in["dft_hid_im"],
    }

def reference(A_x, A_wq, A_wk, A_wv, A_wo, B_x, B_dft_seq_re, B_dft_seq_im, B_dft_hid_re, B_dft_hid_im):
    def _A_ref(x, wq, wk, wv, wo):
        B, S, D = x.shape
        H = 16
        Dh = D // H
        q = (lambda x, *d: x.permute(*d))((x @ wq).reshape(B, S, H, Dh), 0, 2, 1, 3)
        k = x @ wk
        v = x @ wv
        scores = torch.einsum("bhqd,bkd->bhqk", q, k) * (Dh ** -0.5)
        p = _softmax(scores, axis=-1)
        o = torch.einsum("bhqk,bkd->bhqd", p, v)
        return (lambda x, *d: x.permute(*d))(o, 0, 2, 1, 3).reshape(B, S, H * Dh) @ wo

    def _B_ref(x, dft_seq_re, dft_seq_im, dft_hid_re, dft_hid_im):
        a = torch.einsum("bsd,ed->bse", x, dft_hid_re)
        b = torch.einsum("bsd,ed->bse", x, dft_hid_im)
        y = torch.einsum("ts,bse->bte", dft_seq_re, a) - torch.einsum("ts,bse->bte", dft_seq_im, b)
        return y

    a = _A_ref(A_x, A_wq, A_wk, A_wv, A_wo)
    b = _B_ref(B_x, B_dft_seq_re, B_dft_seq_im, B_dft_hid_re, B_dft_hid_im)
    return torch.concatenate([a, b], axis=-1)
```

```python
import re
TRANS = ('v_exp_f32', 'v_log_f32', 'v_rcp_f32', 'v_rsq_f32', 'v_sqrt_f32', 'v_sin_f32', 'v_cos_f32')
def regs_of(tok):
    tok = tok.strip().lstrip('-').strip('|')
    m = re.fullmatch(r'([vas])\[(\d+):(\d+)\]', tok)
    if m: return {(m.group(1), i) for i in range(int(m.group(2)), int(m.group(3)) + 1)}
    m = re.fullmatch(r'([vas])(\d+)', tok)
    if m: return {(m.group(1), int(m.group(2)))}
    if tok == 'vcc': return {('s', 'vcc')}
    if tok == 'm0': return {('s', 'm0')}
    if tok in ('exec', 'exec_lo', 'exec_hi'): return {('s', 'exec')}
    return set()
class Ins:
    def __init__(self, text):
        self.text = text
        t = text.split(';')[0].strip()
        self.label = t.endswith(':') or t.startswith('.') or not t
        self.dst = set(); self.src = set(); self.kind = None; self.states = 0
        if self.label: return
        parts = t.split(None, 1)
        op = self.op = parts[0]
        ops = []
        if len(parts) > 1:
            raw = re.sub(r'\b(op_sel|op_sel_hi|neg_lo|neg_hi):\[[^\]]*\]', '', parts[1])
            ops = [o.strip().split()[0] if o.strip() else '' for o in raw.split(',')]
        R = [regs_of(o) for o in ops]
        U = lambda l: set().union(*l) if l else set()
        self.states = 1
        if op == 's_nop': self.states = int(ops[0]) + 1; self.kind = 'nop'
        elif op.startswith('v_mfma') or op.startswith('v_smfmac'):
            self.kind = 'mfma'; self.dst = R[0]; self.ab = R[1] | R[2]
            self.passes = 4 if '16x16' in op else 8
            if op.startswith('v_smfmac'): self.c = R[0]; self.ab |= R[3]
            else: self.c = R[3]
            self.src = self.ab | self.c
        elif op.startswith('v_'):
            self.kind = 'valu'
            base = op.replace('_e32', '').replace('_e64', '')
            self.trans = base in TRANS
            self.dst = set(R[0]); self.src = U(R[1:])
            if 'permlane32_swap' in op or 'permlane16_swap' in op: self.dst = R[0] | R[1]; self.src = set(self.dst)
            if base in ('v_fmac_f32', 'v_dot2c_f32_bf16'): self.src |= R[0]
            if base == 'v_cndmask_b32' and len(ops) == 3: self.src.add(('s', 'vcc'))
        elif op.startswith('global_') or op.startswith('buffer_'):
            self.kind = 'vmem'; self.dma = '_lds_' in op
            if self.dma: self.src = U(R) | {('s', 'm0')}
            elif 'load' in op: self.dst = R[0]; self.src = U(R[1:])
            else:
                self.src = U(R); self.data = R[1]; self.wide = 'x3' in op or 'x4' in op
        elif op.startswith('ds_'):
            self.kind = 'ds'
            if 'read' in op: self.dst = R[0]; self.src = U(R[1:])
            else: self.src = U(R); self.data = R[1]; self.wide = 'b128' in op or 'b96' in op
        elif op.startswith('s_'):
            self.kind = 'salu'
            if op.startswith(('s_cmp', 's_waitcnt', 's_barrier', 's_cbranch', 's_branch', 's_sleep', 's_endpgm', 's_bitcmp', 's_setprio')):
                self.src = U(R)
            else:
                self.dst = R[0]; self.src = U(R[1:])
                if op in ('s_addk_i32', 's_mulk_i32'): self.src |= R[0]
        else: raise ValueError(text)
def isv(s): return {r for r in s if r[0] in 'va'}
def iss(s): return {r for r in s if r[0] == 's'}
def need(p, c):
    n = 0
    if p.kind == 'valu':
        pv = isv(p.dst); ps = iss(p.dst)
        if c.kind == 'mfma' and pv & c.src: n = max(n, 2)
        if c.kind == 'valu':
            if p.trans and pv & c.src: n = max(n, 1)
            if ('readfirstlane' in c.op or 'readlane' in c.op) and pv & c.src: n = max(n, 1)
            if ('permlane' in c.op or 'dpp' in c.text) and pv & c.src: n = max(n, 2)
            if ps & c.src: n = max(n, 2)
        if p.trans and c.kind in ('vmem', 'ds') and pv & c.src: n = max(n, 1)
        if c.kind == 'vmem' and ps & c.src: n = max(n, 5)
    if p.kind == 'mfma':
        big = 12 if p.passes == 8 else 8
        if c.kind in ('valu', 'vmem', 'ds') and p.dst & (c.src | c.dst): n = max(n, big)
        if c.kind == 'mfma':
            if p.dst & c.ab: n = max(n, big)
            if p.dst & c.c and not (p.dst == c.c): n = max(n, big - 2)
            if p.dst & c.dst and not (p.dst == c.dst): n = max(n, big - 2)
        if c.kind in ('valu', 'ds', 'vmem') and p.c & c.dst: n = max(n, 7 if p.passes == 8 else 3)
    if p.kind == 'salu' and ('s', 'm0') in p.dst and c.kind == 'vmem' and c.dma: n = max(n, 1)
    if p.kind in ('vmem', 'ds') and getattr(p, 'wide', False) and c.kind == 'valu' and p.data & c.dst: n = max(n, 2)
    return n
def fix_hazards(lines, report=False):
    out = []; hist = []; added = 0
    for l in lines:
        c = Ins(l)
        if c.label: out.append(l); continue
        dist = 0; req = 0
        for p in reversed(hist):
            if dist >= 12: break
            if p.kind != 'nop':
                req = max(req, need(p, c) - dist)
            dist += p.states
        if req > 0:
            if report: print('nop', req, 'before', l)
            added += req
            while req > 0:
                k = min(req, 8); t = f's_nop {k-1}'; out.append(t); hist.append(Ins(t)); req -= k
        out.append(l); hist.append(c)
        if c.op in ('s_branch', 's_endpgm'): hist = []
    return out
class E:
    def __init__(self):
        self.L = []; self.vm = []; self.lg = []
    def __call__(self, text, tag=None):
        for t in text.strip().split('\n'):
            t = t.strip()
            if not t: continue
            self.L.append(t)
            op = t.split()[0]
            if op.startswith(('global_', 'buffer_')): self.vm.append(tag); assert len(self.vm) <= 63, t
            elif op.startswith('ds_'): self.lg.append(tag); assert len(self.lg) <= 15, ('lgkm overflow', t)
    def _cnt(self, q, tag):
        if tag is None: return 0 if q else None
        idx = [i for i, x in enumerate(q) if x == tag]
        if not idx: return None
        return len(q) - 1 - idx[-1]
    def wait(self, vm=False, lg=False):
        parts = []
        if vm is not False:
            n = self._cnt(self.vm, vm)
            if n is not None: parts.append(f'vmcnt({n})'); self.vm = self.vm[len(self.vm) - n:] if n else []
        if lg is not False:
            n = self._cnt(self.lg, lg)
            if n is not None: parts.append(f'lgkmcnt({n})'); self.lg = self.lg[len(self.lg) - n:] if n else []
        if parts: self.L.append('s_waitcnt ' + ' '.join(parts))
```

```python
import sys, math, struct
from asmlib import *
NAME = 'concat_heads__grouped_kv_mqa__spectral_fnet__prompt'
def f2u(x): return struct.unpack('<I', struct.pack('<f', x))[0]
XA, WQ, BX, WKV = 0, 58368, 108544, 137728
WO, RED, UB = 1024, 101376, 150528
QX = UB; OEX = RED
FL, KVG, OEXG, UG, STAMP = 0x10000, 0x40000, 0x100000, 0x300000, 0x800000
W, X, G, RI, RG, K0, EXH, S2F = 's22', 's23', 's24', 's25', 's26', 's28', 's29', 's27'
TAG2 = 's[36:37]'; WS = 's[20:21]'
def v(a, n=1): return f'v{a}' if n == 1 else f'v[{a}:{a+n-1}]'
def a(i, n=1): return f'a{i}' if n == 1 else f'a[{i}:{i+n-1}]'
MF = 'v_mfma_f32_32x32x16_bf16'; MF16 = 'v_mfma_f32_16x16x32_bf16'; SM = 'v_smfmac_f32_32x32x32_bf16'
CVT = 'v_cvt_pk_bf16_f32'; DMA = 'global_load_lds_dwordx4'; TR = 'ds_read_b64_tr_b16'

def gen(opt):
    e = E(); stamps = []
    def stamp(name):
        if opt.get('stamp'):
            k = len(stamps); stamps.append(name); assert k < 14
            e.L.append(f's_memrealtime s[{72+2*k}:{73+2*k}]')
    def poll(lbl, vaddr, off, first_issued=False):
        e(f's_mov_b32 s66, 0x40000')
        if first_issued: e(f's_branch {lbl}_c')
        e.L.append(f'{lbl}:')
        if opt.get('sleep', 1): e(f's_sleep {opt.get("sleep", 1)}')
        e.L.append(f'global_load_dwordx2 v[8:9], {vaddr}, {WS} offset:{off} sc1')
        e.L.append(f'{lbl}_c:')
        e.L.append('s_waitcnt vmcnt(0)'); e.vm = []
        e(f'''v_cmp_ne_u64 vcc, {TAG2}, v[8:9]
        s_cbranch_vccz {lbl}_d
        s_sub_u32 s66, s66, 1
        s_cbranch_scc0 {lbl}
        {lbl}_d:''')
    def flag(off):
        e(f'''s_mov_b64 exec, 1
        global_store_dword v5, v4, {WS} offset:{off} sc1
        s_mov_b64 exec, -1''', 'flag')
    e(f'''s_cmp_ge_u32 s2, 256
    s_cbranch_scc1 L_end
    s_load_dwordx8 s[4:11], s[0:1], 0
    s_load_dwordx4 s[12:15], s[0:1], 32
    s_load_dwordx4 s[16:19], s[0:1], 80
    s_load_dwordx2 s[20:21], s[0:1], 96''')
    stamp('start')
    e(f'''v_lshrrev_b32 v5, 6, v0
    v_and_b32 v0, 63, v0
    v_readfirstlane_b32 {W}, v5
    v_lshlrev_b32 v1, 4, v0
    s_and_b32 {X}, s2, 7
    s_bfe_u32 {G}, s2, 0x30003
    s_lshr_b32 {RI}, s2, 6
    s_lshl2_add_u32 {RG}, {X}, {RI}
    s_and_b32 {K0}, {G}, 3
    s_lshl3_add_u32 {S2F}, {X}, {G}
    s_mov_b32 {EXH}, 0xffffff
    s_lshl2_add_u32 s30, {K0}, {W}
    s_mul_i32 s31, s30, {4*896}
    s_mul_i32 m0, s30, {4*912}
    v_add_u32 v200, s31, v1
    s_mul_i32 s32, {W}, {7*896}
    v_add_u32 v201, s32, v1
    v_add_u32 v202, 4480, v201
    s_lshl_b32 s33, {W}, 9
    s_add_u32 s33, s33, {S2F}
    s_mulk_i32 s33, 896
    v_add_u32 v203, s33, v1
    s_mul_i32 s34, {RG}, 57344
    s_add_u32 s32, s32, {WKV}
    s_mul_i32 s35, {W}, {8*912}
    s_add_u32 s35, s35, {BX}
    s_mov_b32 s38, 57344
    v_mov_b32 v112, 0
    s_cmp_ge_u32 {G}, 4
    s_mov_b32 exec_hi, {EXH}
    s_waitcnt lgkmcnt(0)
    s_cselect_b64 s[8:9], s[10:11], s[8:9]
    s_add_u32 s4, s4, s34
    s_addc_u32 s5, s5, 0''')
    for k in range(4):
        e(f'{DMA} v200, s[4:5] offset:{k*896}', 'b1')
        e('s_addk_i32 m0, 16' if k < 3 else 's_mov_b32 m0, s32')
    for k in range(5): e(f'{DMA} v201, s[8:9] offset:{k*896}', 'b1')
    e('s_addk_i32 m0, 4480')
    for k in range(2): e(f'{DMA} v202, s[8:9] offset:{k*896}', 'b1')
    e(f's_mov_b32 m0, s35')
    e(f'global_load_dword v4, v112, {WS} sc1', 'b1')
    for k in range(8):
        e(f'{DMA} v203, s[14:15]', 'bx')
        if k < 7: e('s_addk_i32 m0, 912\nv_add_u32 v203, s38, v203')
    e('s_mov_b32 exec_hi, -1')
    stamp('issued')
    N, H, C3, R3, MH, N16, GG = 'v206', 'v207', 'v208', 'v209', 'v210', 'v211', 'v212'
    e(f'''v_and_b32 {N}, 31, v0
    v_lshrrev_b32 {H}, 5, v0
    v_and_b32 {C3}, 3, v0
    v_bfe_u32 {R3}, v0, 2, 2
    v_bfe_u32 {MH}, v0, 4, 1
    v_and_b32 {N16}, 15, v0
    v_lshrrev_b32 {GG}, 4, v0''')
    e(f'''s_lshl2_add_u32 s30, {RI}, {W}
    s_mul_i32 s31, s30, 14
    v_and_b32 v90, 7, v0
    v_lshl_add_u32 v90, {MH}, 3, v90
    v_add_u32 v90, s31, v90
    v_cvt_f32_u32 v90, v90
    v_mul_f32 v90, {hex(f2u(1/448))}, v90
    v_bfe_u32 v91, v0, 3, 1
    v_cvt_f32_u32 v91, v91
    v_mul_f32 v91, 0x3e800000, v91
    v_cvt_f32_u32 v92, {H}
    v_mul_f32 v93, 0x41000000, v92
    v_fma_f32 v72, v90, v93, v91''')
    for u in range(1, 8): e(f'v_add_f32 v{72+u}, v{71+u}, v90')
    e(f'v_mul_f32 v88, 0x41800000, v90')
    for u in range(8): e(f'v_add_f32 v{80+u}, v{72+u}, v88')
    e('v_cos_f32 v88, v88')
    for u in range(16): e(f'v_cos_f32 v{72+u}, v{72+u}')
    e(f'''v_add_f32 v88, v88, v88
    v_lshlrev_b32 v116, 31, v0
    v_lshrrev_b32 v118, 16, v116
    v_or_b32 v118, v118, v116
    v_or_b32 v116, 1.0, v116''')
    for st in range(14):
        cur = 72 + 8 * (st % 2); oth = 72 + 8 * (1 - st % 2)
        if st >= 2:
            for p in range(4):
                e(f'v_pk_fma_f32 {v(cur+2*p,2)}, {v(oth+2*p,2)}, v[88:89], {v(cur+2*p,2)} op_sel_hi:[1,0,1] neg_lo:[0,0,1] neg_hi:[0,0,1]')
        for p in range(4): e(f'{CVT} v{128+4*st+p}, v{cur+2*p}, v{cur+2*p+1}')
    e(f'''v_cvt_f32_u32 v90, {N}
    v_lshl_add_u32 v91, {H}, 8, {S2F}
    v_cvt_f32_u32 v91, v91
    v_mul_f32 v90, 0x3d000000, v90
    v_mul_f32 v91, 0x3c800000, v91
    v_mul_f32 v72, v90, v91''')
    for u in range(1, 8):
        if u == 4: e(f'v_fmamk_f32 v76, v90, 0x41000000, v72')
        else: e(f'v_add_f32 v{72+u}, v{71+u}, v90')
    for u in range(8): e(f'v_sin_f32 v{80+u}, v{72+u}')
    for u in range(8): e(f'v_cos_f32 v{72+u}, v{72+u}')
    for p in range(8): e(f'{CVT} v{16+(p+4)%8}, v{72+(2*p+8)%16}, v{73+(2*p+8)%16}')
    for p in range(8): e(f'v_xor_b32 v{24+p}, v118, v{16+p}')
    A_KW, A_KX, A_F1, A_US, A_QT, A_QB, A_QW, A_WQ = 'v213', 'v214', 'v215', 'v216', 'v217', 'v218', 'v219', 'v223'
    e(f'''v_mov_b32 v113, 0
    v_mov_b32 v114, 0
    v_mov_b32 v115, 0
    v_mov_b32 v2, 0xdddddddd
    v_lshl_add_u32 v90, {GG}, 3, {R3}
    v_mul_u32_u24 v90, 56, v90
    v_lshl_add_u32 v90, {C3}, 3, v90
    s_lshl_b32 s31, {W}, 5
    s_add_u32 s31, s31, {WKV}
    v_add_u32 {A_KW}, s31, v90
    s_movk_i32 s39, 912
    s_mul_i32 s31, {K0}, {16*912}
    v_lshl_add_u32 v90, {GG}, 4, s31
    v_mad_u32_u24 {A_KX}, {N16}, s39, v90
    v_lshlrev_b32 v91, 4, {H}
    v_mad_u32_u24 v90, {N}, s39, v91
    v_add_u32 {A_F1}, {BX}, v90
    s_lshr_b32 s32, {W}, 1
    s_and_b32 s33, {W}, 1
    s_mul_i32 s31, s32, {32*912}
    v_add_u32 {A_QB}, s31, v90
    s_lshr_b32 s31, s30, 1
    s_lshl_b32 s31, s31, 6
    s_add_u32 s31, s31, {S2F}
    s_lshl1_add_u32 s31, s31, s33
    s_lshl_b32 s31, s31, 6
    s_add_u32 s31, s31, {UG}
    v_lshl_add_u32 v90, {N}, 16, v91
    v_add_u32 {A_US}, s31, v90
    v_lshl_add_u32 v90, {R3}, 1, {H}
    v_mul_u32_u24 v90, 224, v90
    v_and_b32 v92, 1, v0
    v_bfe_u32 v93, v0, 1, 1
    v_lshl_add_u32 v94, {MH}, 1, v92
    v_lshl_add_u32 v94, v94, 1, v93
    v_lshl_add_u32 v90, v94, 3, v90
    s_mul_i32 s31, s33, 56
    s_add_u32 s31, s31, {WQ}
    v_add_u32 {A_QT}, s31, v90
    s_lshl_b32 s31, {W}, 11
    s_add_u32 s31, s31, {QX}
    v_add_u32 {A_QW}, s31, v1''')
    for i in range(3):
        e(f'''s_add_u32 s31, {W}, {i+1}
        s_and_b32 s31, s31, 3
        s_lshl_b32 s34, s31, 11
        s_add_u32 s34, s34, {QX}
        v_add_u32 v{220+i}, s34, v1
        s_mul_i32 s34, s31, 12288
        s_add_u32 s34, s34, {RED + (2-i)*4096}
        v_add_u32 v{13-i}, s34, v1''')
    e(f'''v_mul_u32_u24 v95, 37, v0
    v_lshrrev_b32 v95, 8, v95
    v_mul_u32_u24 v96, 112, v95
    v_sub_u32 v96, v1, v96
    v_bfe_u32 v97, v95, 1, 1
    v_and_b32 v98, 1, v95
    v_lshrrev_b32 v99, 2, v95
    v_lshl_add_u32 v100, v97, 1, v98
    v_lshl_add_u32 v100, v100, 2, v99
    s_movk_i32 s38, 896
    v_mad_u32_u24 v100, v100, s38, v96
    s_mul_i32 s34, {W}, {112*896}
    s_mul_i32 s31, {G}, 112
    s_add_u32 s31, s31, s34
    v_add_u32 {A_WQ}, s31, v100
    v_mul_u32_u24 v98, 112, v98
    v_lshl_add_u32 v97, v97, 2, v99
    v_mad_u32_u24 v97, v97, s38, v96
    s_lshr_b32 s35, {G}, 1
    s_mul_i32 s31, s35, 224
    s_add_u32 s31, s31, s34
    v_add3_u32 v3, v97, v98, s31''')
    e(f'''s_lshl_b32 s31, {RI}, 6
    s_add_u32 s31, s31, {S2F}
    s_mul_i32 s34, s31, 384
    s_lshl2_add_u32 s34, {W}, s34
    s_add_u32 s34, s34, {FL}
    v_mov_b32 v5, s34
    s_movk_i32 s39, 384
    s_mul_i32 s34, {W}, {64*384}
    s_add_u32 s34, s34, {FL}
    v_mov_b32 v6, s34
    v_mad_u32_u24 v6, v0, s39, v6
    s_and_b32 s56, {G}, 1
    s_lshl2_add_u32 s34, s35, {W}
    s_mul_i32 s34, s34, {16*384}
    s_lshl3_add_u32 s34, s56, s34
    s_add_u32 s34, s34, {FL}
    v_mov_b32 v7, s34
    v_mad_u32_u24 v7, {N16}, s39, v7
    s_andn2_b32 s31, s31, 7
    s_lshl1_add_u32 s31, {W}, s31
    s_mul_i32 s31, s31, 384
    s_lshl3_add_u32 s31, s56, s31
    s_add_u32 s57, s31, {FL}
    s_mul_i32 s31, {W}, 12288
    s_add_u32 s31, s31, {RED}
    v_add_u32 v10, s31, v1
    s_lshl3_add_u32 s31, {RG}, {G}
    s_lshl2_add_u32 s31, s31, {W}
    s_lshl_b32 s31, s31, 11
    s_add_u32 s31, s31, {UG}
    v_add_u32 v14, s31, v1
    s_lshl1_add_u32 s31, {RG}, s32
    s_lshl3_add_u32 s31, s31, {G}
    s_lshl1_add_u32 s31, s31, s33
    s_lshl_b32 s31, s31, 11
    s_add_u32 s31, s31, {OEXG}
    v_add_u32 v15, s31, v1
    s_lshl1_add_u32 s58, {RG}, s56
    s_lshl2_add_u32 s31, s58, {W}
    s_lshl_b32 s31, s31, 13
    s_add_u32 s31, s31, {OEXG}
    v_add_u32 v120, s31, v1
    v_add_u32 v127, {OEX}, v1
    v_lshl_add_u32 v94, {MH}, 1, v93
    v_bfe_u32 v95, v0, 3, 1
    v_lshl_add_u32 v95, {H}, 2, v95
    v_lshl_add_u32 v95, v95, 1, v92
    v_lshl_add_u32 v95, v95, 2, v94
    v_bfe_u32 v96, v0, 2, 1
    v_lshl_add_u32 v95, v95, 1, v96
    v_lshlrev_b32 v95, 3, v95
    v_add_u32 v121, {UB}, v95
    v_mul_u32_u24 v95, 24, v92
    v_lshl_add_u32 v95, v94, 3, v95
    v_mul_u32_u24 v96, 448, {R3}
    s_mul_i32 s59, {W}, 56
    s_add_u32 s31, s59, {WO + 57344}
    v_add3_u32 v124, v95, v96, s31
    v_mul_u32_u24 v96, 1792, {H}
    v_add_u32 v123, v124, v96
    v_add_u32 v122, -57344, v123
    s_lshl_b32 s31, s33, 10
    s_add_u32 s31, s31, {RG}
    v_lshl_add_u32 v95, {N}, 5, s31
    s_mul_i32 s34, {G}, 56
    v_mul_u32_u24 v96, 28, {H}
    v_add_u32 v96, s34, v96
    s_cmp_ge_u32 {W}, 2
    s_cbranch_scc0 L_nomir
    v_sub_u32 v95, 0x800, v95
    v_and_b32 v95, 0x7ff, v95
    v_sub_u32 v96, 868, v96
    L_nomir:
    s_movk_i32 s39, 1792
    v_mad_u32_u24 v125, v95, s39, v96
    s_mul_i32 s31, s58, {32*1792}
    s_mul_i32 s34, s35, 224
    s_add_u32 s31, s31, s34
    s_add_u32 s31, s31, s59
    v_mul_u32_u24 v96, 24, {H}
    v_mad_u32_u24 v96, {N}, s39, v96
    v_add_u32 v126, s31, v96
    s_lshl_b32 s34, {W}, 16
    s_add_u32 s34, s34, {KVG + 4096}''')
    for k in range(8):
        e(f'''s_add_u32 s31, {X}, {k}
        s_and_b32 s31, s31, 7
        s_lshl_b32 s31, s31, 13
        s_add_u32 s31, s31, s34
        s_add_u32 s{40+2*k}, s20, s31
        s_addc_u32 s{41+2*k}, s21, 0''')
    e(f'''s_lshl3_add_u32 s31, {RI}, {X}
    s_lshr_b32 s34, {K0}, 1
    s_lshl1_add_u32 s31, s31, s34
    s_lshl_b32 s31, s31, 12
    s_add_u32 s60, s31, {KVG}
    s_and_b32 s61, {K0}, 1
    s_mul_i32 s62, {W}, {14*896}
    s_add_u32 s62, s62, {WQ}
    s_mov_b32 s67, 0
    s_cmp_ge_u32 {W}, 2''')
    stamp('consts')
    e.wait(vm='b1')
    e(f'''v_readfirstlane_b32 s36, v4
    s_barrier''')
    stamp('bar1')
    e(f'''s_cbranch_scc1 L_xrest
    s_cmp_ge_u32 {G}, 4
    s_cbranch_scc1 L_vproj''')
    vm0 = list(e.vm)
    def kvproj(isv):
        def rd(st):
            e(f'ds_read_b128 {a(56+4*st,4)}, {A_KX} offset:{64*st}', ('k', st))
            for i in range(2): e(f'{TR} {a(4*st+2*i,2)}, {A_KW} offset:{1792*st+224*i}', ('k', st))
        for st in range(5): rd(st)
        e(f'''v_and_b32 v90, 1, {GG}
        v_lshlrev_b32 v90, 3, v90
        v_lshl_add_u32 v90, {H}, 9, v90''')
        if not isv:
            e(f'''s_lshl2_add_u32 s31, {W}, s61
            s_lshl_b32 s31, s31, 8
            s_add_u32 s31, s31, s60
            v_lshl_add_u32 v90, {N16}, 4, v90
            s_mov_b32 s30, {hex(f2u(math.log2(math.e) / math.sqrt(28)))}''')
        else:
            e(f'''s_lshl2_add_u32 s31, s61, {W}
            s_lshl_b32 s31, s31, 8
            s_add_u32 s31, s31, s60
            s_addk_i32 s31, 2048
            v_lshl_add_u32 v90, {C3}, 4, v90
            v_bfe_u32 v91, v0, 2, 1
            v_lshl_add_u32 v90, v91, 7, v90
            v_bfe_u32 v91, v0, 3, 1
            v_lshl_add_u32 v90, v91, 6, v90''')
        e(f'v_add_u32 v90, s31, v90\ns_cmp_eq_u32 {W}, 1')
        for st in range(14):
            e.wait(lg=('k', st))
            A, B = a(4*st, 4), a(56+4*st, 4)
            if isv: A, B = B, A
            e(f'{MF16} v[72:75], {A}, {B}, {"0" if st == 0 else "v[72:75]"}')
            if st + 5 < 14: rd(st + 5)
        if not isv:
            e('s_cselect_b32 s35, 0xffff0000, 0\ns_mov_b32 s34, 0')
            for r in range(4): e(f'v_mul_f32 v{72+r}, s30, v{72+r}')
            e(f'''{CVT} v76, v72, v73
            {CVT} v77, v74, v75
            s_mov_b64 exec, s[34:35]
            v_mov_b32 v76, 0x3f80
            v_mov_b32 v77, 0''')
        else:
            e(f'''s_cselect_b32 s34, 0xe000e000, 0
            s_cselect_b32 s30, 0x10001000, 0
            s_mov_b32 s35, s34
            s_mov_b32 s31, s30
            {CVT} v76, v72, v73
            {CVT} v77, v74, v75
            s_mov_b64 exec, s[34:35]
            v_mov_b32 v76, 0
            v_mov_b32 v77, 0
            s_mov_b64 exec, s[30:31]
            v_mov_b32 v76, 0x3f803f80
            v_mov_b32 v77, 0x3f803f80''')
        e('s_mov_b64 exec, -1')
        e(f'global_store_dwordx2 v90, v[76:77], {WS} sc1', 'kv')
        e.wait(vm='bx')
        e('s_branch L_join')
    kvproj(False)
    e.vm = list(vm0); e('L_vproj:'); kvproj(True)
    vmA = list(e.vm)
    e.vm = list(vm0)
    e(f'L_xrest:\ns_mov_b32 exec_hi, {EXH}')
    for i in range(1, 4):
        e(f'''s_xor_b32 s30, {K0}, {i}
        s_lshl1_add_u32 s30, s30, s33
        s_mul_i32 s31, s30, {8*896}
        s_mul_i32 m0, s30, {8*912}
        v_add_u32 v200, s31, v1
        v_add_u32 v201, {4*896}, v200''')
        for k in range(8):
            e(f'{DMA} v{200+k//4}, s[4:5] offset:{(k%4)*896}', 'x')
            if k < 7: e(f's_addk_i32 m0, {16 if k != 3 else 16 + 4*896}')
    e('s_mov_b32 exec_hi, -1')
    e.wait(vm='bx')
    e('L_join:')
    e.vm = list(vmA)
    e(f'''s_add_u32 s36, s36, 1
    s_mov_b32 s37, s36
    v_mov_b32 v4, s36
    s_mov_b32 m0, s62
    s_movk_i32 s38, 14336
    s_cmp_ge_u32 {W}, 2
    s_barrier''')
    stamp('bar2')
    def rdf(st): e(f'ds_read_b128 {a(112+4*st,4)}, {A_F1} offset:{32*st}', ('f', st))
    for st in range(12): rdf(st)
    for st in range(28):
        e.wait(lg=('f', st))
        z = v(72 if st < 14 else 88, 16)
        e(f'{MF} {z}, {a(112+4*st,4)}, {v(128+4*(st%14),4)}, {"0" if st % 14 == 0 else z}')
        if st < 14:
            e(f's_mov_b32 exec_hi, {EXH}')
            e(f'{DMA} {A_WQ}, s[6:7] offset:{1792*(st%2)}', 'wq')
            e(f's_mov_b32 exec_hi, -1')
            if st < 13: e(f's_add_u32 m0, m0, {-896 if st % 2 == 0 else 2688}' if False else f's_addk_i32 m0, {-896 if st % 2 == 0 else 2688}')
            if st % 2 == 1 and st < 13: e(f'v_add_u32 {A_WQ}, s38, {A_WQ}')
        if st + 12 < 28: rdf(st + 12)
        if st == opt.get('fl1', 16):
            e(f's_cmp_ge_u32 {W}, 2\ns_cbranch_scc1 L_nofl1')
            e.wait(vm='kv'); flag(0); e.vm.pop()
            e('L_nofl1:')
    for p in range(8):
        e(f'v_pk_fma_f32 {v(72+2*p,2)}, {v(88+2*p,2)}, v[116:117], {v(72+2*p,2)} op_sel_hi:[1,0,1]')
    for p in range(8): e(f'{CVT} v{104+p}, v{72+2*p}, v{73+2*p}')
    e(f'''{MF} v[72:87], v[104:107], v[16:19], 0
    {MF} v[88:103], v[104:107], v[20:23], 0
    {MF} v[72:87], v[108:111], v[24:27], v[72:87]
    {MF} v[88:103], v[108:111], v[28:31], v[88:103]''')
    for i in range(2):
        for b in range(4): e(f'v_add_f32 v{72+8*i+b}, v{72+8*i+b}, v{92+8*i+b}')
        for b in range(4): e(f'v_sub_f32 v{76+8*i+b}, v{76+8*i+b}, v{88+8*i+b}')
        for p in range(4): e(f'{CVT} v{104+4*i+p}, v{72+8*i+2*p}, v{73+8*i+2*p}')
        e(f'global_store_dwordx4 {A_US}, {v(104+4*i,4)}, {WS} offset:{32*i} sc1', 'u')
    stamp('f1done')
    e.wait(vm='wq')
    e('s_barrier')
    stamp('bar3')
    def rdq(st):
        e(f'ds_read_b128 {a(8*st+4,4)}, {A_QB} offset:{32*st}', ('q', st))
        for i in range(2): e(f'{TR} {a(8*st+2*i,2)}, {A_QT} offset:{(16*st+i)*112}', ('q', st))
    for st in range(5): rdq(st)
    for st in range(28):
        e.wait(lg=('q', st))
        e(f'{MF} v[184:199], {a(8*st,4)}, {a(8*st+4,4)}, {"0" if st == 0 else "v[184:199]"}')
        if st + 5 < 28: rdq(st + 5)
        if st == opt.get('fl2', 24):
            e.wait(vm=None); flag(128)
    for d in (a(0,16), a(16,16), a(32,16), v(16,16)): e(f'{MF} {d}, v[112:115], v[112:115], 0')
    e(f'global_load_dwordx2 v[8:9], v6, {WS} sc1', 'p')
    for p in range(8): e(f'{CVT} v{32+p}, v{184+2*p}, v{185+2*p}')
    e(f'''s_mov_b32 exec_lo, 0
    v_mov_b32 v38, 0xc1f0
    v_mov_b32 v39, 0
    s_mov_b32 exec_lo, -1
    ds_write_b128 {A_QW}, v[32:35]
    ds_write_b128 {A_QW}, v[36:39] offset:1024''')
    e.wait(lg=None)
    e('s_barrier')
    for i in range(3):
        for j in range(2): e(f'ds_read_b128 {a(48+8*i+4*j,4)}, v{220+i} offset:{1024*j}')
    e(f's_mul_i32 m0, {W}, {28*896}\ns_addk_i32 m0, {WO}')
    e.wait(lg=None)
    e('s_barrier')
    stamp('qdone')
    poll('L_p1', 'v6', 0, True)
    stamp('kvrdy')
    def kvreg(kt, i): return v(128+16*kt+4*i, 4) if kt < 8 else a(72+16*(kt-8)+4*i, 4)
    def kvload(n):
        kt, i = divmod(n, 4)
        e(f'global_load_dwordx4 {kvreg(kt,i)}, v1, s[{40+2*(kt//2)}:{41+2*(kt//2)}] offset:{(kt%2)*4096+i*1024-4096} sc1', ('kv', n))
    NUP = opt.get('nup', 16)
    for n in range(NUP): kvload(n)
    e(f'''s_lshl_b32 s31, s33, 5
    v_and_b32 v104, 31, v0
    v_add_u32 v104, s31, v104
    v_cvt_f32_u32 v104, v104
    v_mul_f32 v104, 0x3c800000, v104
    v_lshrrev_b32 v105, 5, v0
    v_cvt_f32_u32 v105, v105
    v_mul_f32 v105, 4.0, v105
    v_mul_f32 v105, v104, v105
    v_and_b32 v6, 1, v0
    v_mul_u32_u24 v6, 384, v6
    v_add_u32 v6, s57, v6''')
    for k in range(16):
        e(f'v_cos_f32 v106, v105\nv_sin_f32 v107, v105')
        if k < 15: e('v_add_f32 v105, v105, v104' if k % 4 != 3 else 'v_fmamk_f32 v105, v104, 0x40a00000, v105')
        e(f'{CVT} v{40+k}, v106, v107\nv_xor_b32 v{56+k}, v118, v{40+k}')
    def unit(n): return (n % 4, n // 4) if n < 48 else ((n - 48) // 4, 12 + (n - 48) % 4)
    def S(n): return 72 + 16 * (n % 3)
    def Q(s, j): return a(48+8*s+4*j, 4) if s < 3 else v(32+4*j, 4)
    def O(s): return a(16*s, 16) if s < 3 else v(16, 16)
    def qk(n, j):
        s, kt = unit(n); e.wait(vm=('kv', 4*kt+j))
        e(f'{MF} {v(S(n),16)}, {kvreg(kt,j)}, {Q(s,j)}, {"0" if j == 0 else v(S(n),16)}')
    def pv(n, j):
        s, kt = unit(n); e.wait(vm=('kv', 4*kt+2+j))
        e(f'{SM} {O(s)}, {kvreg(kt,2+j)}, {v(S(n)+8*j,8)}, v2')
    def ex(n, i0, i1):
        for i in range(i0, i1): e(f'v_exp_f32 v{S(n)+i}, v{S(n)+i}')
    F = {}
    def fill(m, g, fn): F.setdefault((m, g), []).append(fn)
    n = NUP; m = 1
    while n < 64:
        fill(m, 0, lambda n=n: kvload(n)); n += 1
        if m % 3 == 0 and n < 64: fill(m, 1, lambda n=n: kvload(n)); n += 1
        m += 1
    m0 = m
    for kt in range(1, 16):
        first = min(n for n in range(64) if unit(n)[1] == kt)
        fill(first - 1, 3, lambda kt=kt: e.wait(vm=('kv', 4*kt+3)))
    fill(m0, 0, lambda: e(f'global_load_dwordx2 v[8:9], v7, {WS} offset:128 sc1', 'p2'))
    def wodma(p):
        e(f's_mov_b32 exec_hi, {EXH}')
        e(f'{DMA} v3, s[12:13] offset:{1792*(p%2)}', 'wo')
        e(f's_mov_b32 exec_hi, -1')
    def womove(p):
        if p % 2 == 0: e('s_addk_i32 m0, -896')
        else: e('s_addk_i32 m0, 2688')
    def wobase(): e('s_add_u32 s12, s12, 7168\ns_addc_u32 s13, s13, 0')
    mU = m0 + 6
    def udma():
        e.wait(vm='p2')
        e(f'''v_cmp_ne_u64 vcc, {TAG2}, v[8:9]
        s_mov_b32 s63, m0
        s_lshl_b32 m0, {W}, 11
        s_cbranch_vccnz L_p2
        L_p2r:
        s_add_u32 m0, m0, {UB}''')
    def udma2(): e(f'{DMA} v14, {WS} sc1', 'ud')
    def udma3(): e(f'{DMA} v14, {WS} offset:1024 sc1\ns_mov_b32 m0, s63', 'ud')
    fill(mU, 1, udma); fill(mU, 2, udma2); fill(mU, 3, udma3)
    p = 0; m = m0
    while p < 28:
        if m == mU: m += 1
        two = (m - m0) % 3 == 2 and p % 2 == 0
        if two:
            fill(m, 0, lambda p=p: wodma(p)); fill(m, 1, lambda p=p: womove(p)); p += 1
        fill(m, 2, lambda p=p: wodma(p))
        if p < 27:
            fill(m, 3, lambda p=p: womove(p))
            if p % 2 == 1: fill(m + 1, 1 if m + 1 != mU else 0, wobase) if not ((m + 1 - m0) % 3 == 2) else fill(m, 3, wobase)
        p += 1; m += 1
    assert m <= 62, m
    def redw(s, q): e(f'ds_write_b128 v10, {a(16*s+4*q,4)} offset:{4096*s+1024*q}')
    for s in range(2):
        for q in range(4): fill(55 + 4*s + q//2, 1 + 2*(q%2), lambda s=s, q=q: redw(s, q))
    for q in range(4): fill(62 + (q+2)//4, (q+2) % 4, lambda q=q: redw(2, q))
    def redbar():
        e.wait(vm='ud', lg=None); e('s_barrier')
    fill(63, 3, redbar)
    def rf(m, g):
        for fn in F.get((m, g), []): fn()
    e('.p2align 3')
    qk(0, 0); qk(0, 1)
    stamp('att0')
    for m in range(1, 64):
        qk(m, 0); rf(m, 0); ex(m-1, 0, 4)
        qk(m, 1); rf(m, 1); ex(m-1, 4, 8)
        if m >= 2: pv(m-2, 0)
        rf(m, 2); ex(m-1, 8, 12)
        if m >= 2: pv(m-2, 1)
        rf(m, 3); ex(m-1, 12, 16)
    def redr(k): e(f'ds_read_b128 {v(128+4*k,4)}, v{11+k//4} offset:{1024*(k%4)}', ('r', k))
    pv(62, 0); [redr(k) for k in (0, 4, 8)]; ex(63, 0, 4)
    pv(62, 1); [redr(k) for k in (1, 5, 9)]; ex(63, 4, 10)
    pv(63, 0); [redr(k) for k in (2, 6, 10)]; ex(63, 10, 16)
    [redr(k) for k in (3, 7, 11)]
    pv(63, 1)
    stamp('attend')
    for q in range(4):
        e.wait(lg=('r', 8+q))
        for b in range(4): e(f'v_add_f32 v{128+4*q+b}, v{128+4*q+b}, v{144+4*q+b}')
        for b in range(4): e(f'v_add_f32 v{128+4*q+b}, v{128+4*q+b}, v{160+4*q+b}')
    order = [12] + [r for r in range(16) if r != 12]
    for r in order: e(f'v_add_f32 v{16+r}, v{16+r}, v{128+r}')
    e('L_norm:')
    e(f'''v_mov_b32 v72, v28
    v_mov_b32 v73, v28
    s_mov_b32 exec_lo, 0
    v_mov_b32 v28, 0
    s_mov_b32 exec_lo, -1
    v_permlane32_swap_b32 v72, v73
    v_rcp_f32 v74, v73''')
    for j in range(2):
        for r in range(8): e(f'v_mul_f32 v{16+8*j+r}, v74, v{16+8*j+r}')
        for p in range(4): e(f'{CVT} v{76+4*j+p}, v{16+8*j+2*p}, v{17+8*j+2*p}')
        e(f'global_store_dwordx4 v15, {v(76+4*j,4)}, {WS} offset:{1024*j} sc1', 'o')
    e(f'v_mul_f32 v75, 0, v16')
    for r in range(1, 16): e(f'v_fmac_f32 v75, 0, v{16+r}')
    e(f'''v_add_f32 v75, v75, v73
    v_cmp_nle_f32 vcc, {hex(f2u(2.0**-80))}, v75
    s_mov_b64 s[70:71], vcc
    v_cmp_nge_f32 vcc, {hex(f2u(2.0**110))}, v75
    s_or_b64 vcc, vcc, s[70:71]''')
    if opt.get('forceslow'): e('s_cmp_eq_u32 s67, s67')
    e('s_cbranch_scc1 L_slow\nL_ok:')
    def rdu(st):
        for i in range(2): e(f'{TR} {v(176+4*st+2*i,2)}, v121 offset:{(8*st+2*i)*128}', ('u', st))
    for st in range(7): rdu(st)
    for st in range(8):
        e.wait(lg=('u', st))
        e(f'{MF} v[208:223], {v(176+4*st,4)}, {v(40+4*st,4)}, {"0" if st == 0 else "v[208:223]"}')
        if st == 0: rdu(7)
    e.wait(vm=None); flag(256)
    stamp('fl3')
    e('s_barrier')
    e(f'''s_or_b32 s31, s2, {W}
    s_cbranch_scc1 L_noep
    v_mov_b32 v8, 0
    s_mov_b64 exec, 1''')
    e.L.append(f'global_store_dword v8, v4, {WS} sc1')
    e(f'''s_mov_b64 exec, -1
    L_noep:
    s_nop 3
    s_cmp_ge_u32 {W}, 2
    s_cbranch_scc1 L_mir''')
    for i in range(7): e(f'{CVT} v{224+i}, v{208+2*i}, v{209+2*i}')
    e('s_branch L_mird\nL_mir:')
    for i in range(7): e(f'{CVT} v{224+i}, v{208+14-2*i}, v{208+13-2*i}')
    e(f'''L_mird:
    global_store_dwordx4 v125, v[224:227], s[16:17] offset:896
    global_store_dwordx3 v125, v[228:230], s[16:17] offset:912''')
    for st in range(32):
        for i in range(2):
            Q0 = 7*(st//2) + 4*(st%2) + i; off = (8*(Q0//2) + Q0 % 2) * 224
            reg = 'v122'
            if off >= 57344: reg = 'v123'; off -= 57344
            if st == 31 and i == 1: reg = 'v124'
            if len(e.lg) >= 15: e.wait(lg=e.lg[3])
            e(f'{TR} {a(72+4*st+2*i,2)}, {reg} offset:{off}', ('w', st, i))
    e(f's_lshl_b32 m0, {W}, 13\ns_add_u32 m0, m0, {OEX}\nv_add_u32 v121, 4096, v120')
    poll('L_p3', 'v6', 256)
    stamp('ordy')
    for k in range(8):
        if k == 4: e('s_addk_i32 m0, 4096')
        e(f'{DMA} v{120+k//4}, {WS} offset:{1024*(k%4)} sc1', 'od')
    e.wait(vm=None, lg=None)
    e('s_barrier')
    def rdo(st): e(f'ds_read_b128 {v(128+4*st,4)}, v127 offset:{1024*st}', ('o', st))
    for st in range(12): rdo(st)
    for st in range(32):
        e.wait(lg=('o', st))
        e(f'{MF} v[72:87], {a(72+4*st,4)}, {v(128+4*st,4)}, {"0" if st == 0 else "v[72:87]"}')
        if st + 12 < 32: rdo(st + 12)
    for j in range(2):
        for p in range(4): e(f'{CVT} v{88+4*j+p}, v{72+8*j+2*p}, v{73+8*j+2*p}')
        e(f'global_store_dwordx4 v126, {v(88+4*j,4)}, s[16:17] offset:{16*j}')
    if opt.get('stamp'):
        e.L.append('s_waitcnt vmcnt(0)')
        stamp('end')
        e(f's_lshl2_add_u32 s31, s2, {W}\ns_lshl_b32 s31, s31, 6\ns_add_u32 s31, s31, {STAMP}\nv_mov_b32 v1, s31\ns_waitcnt lgkmcnt(0)\ns_mov_b64 exec, 1')
        for k in range(len(stamps)):
            e.L.append(f'v_mov_b32 v{8+k}, s{72+2*k}'); e.L.append(f'global_store_dword v1, v{8+k}, {WS} offset:{4*k}')
    e('L_end:\ns_endpgm')
    e.vm = []; e.lg = []
    e('L_p2:'); poll('L_p2l', 'v7', 128); e('s_branch L_p2r')
    e(f'''L_slow:
    s_cmp_lg_u32 s67, 0
    s_cbranch_scc1 L_ok
    s_mov_b32 s67, 1
    s_waitcnt vmcnt(0)
    v_add_u32 v104, {KVG}, v1
    v_mov_b32 v105, 0xff800000
    s_movk_i32 s31, 63
    L_s1:
    global_load_dwordx4 v[128:131], v104, {WS} sc1
    global_load_dwordx4 v[132:135], v104, {WS} offset:1024 sc1
    v_add_u32 v104, 4096, v104
    s_waitcnt vmcnt(0)
    {MF} v[72:87], v[128:131], v[32:35], 0
    {MF} v[72:87], v[132:135], v[36:39], v[72:87]''')
    for p in range(8): e(f'v_max3_f32 v105, v{72+2*p}, v{73+2*p}, v105')
    e(f'''s_sub_u32 s31, s31, 1
    s_cbranch_scc0 L_s1
    v_mov_b32 v106, v105
    s_nop 1
    v_permlane32_swap_b32 v105, v106
    v_max_f32 v105, v105, v106''')
    for r in range(16): e(f'v_mul_f32 v{88+r}, -1.0, v105\nv_mov_b32 v{16+r}, 0')
    e.vm = []
    e(f'''v_add_u32 v104, {KVG}, v1
    s_movk_i32 s31, 63
    L_s2:
    global_load_dwordx4 v[128:131], v104, {WS} sc1
    global_load_dwordx4 v[132:135], v104, {WS} offset:1024 sc1
    global_load_dwordx4 v[136:139], v104, {WS} offset:2048 sc1
    global_load_dwordx4 v[140:143], v104, {WS} offset:3072 sc1
    v_add_u32 v104, 4096, v104
    s_waitcnt vmcnt(0)
    {MF} v[72:87], v[128:131], v[32:35], v[88:103]
    {MF} v[72:87], v[132:135], v[36:39], v[72:87]''')
    for r in range(16): e(f'v_exp_f32 v{72+r}, v{72+r}')
    e(f'''{SM} v[16:31], v[136:139], v[72:79], v2
    {SM} v[16:31], v[140:143], v[80:87], v2
    s_nop 7
    s_nop 7
    s_sub_u32 s31, s31, 1
    s_cbranch_scc0 L_s2
    s_branch L_norm''')
    body = fix_hazards(e.L, opt.get('report'))
    head = open(f'cdna_kernels/{NAME}.s.ref').read().split('\n')
    i0 = [i for i, l in enumerate(head) if l.startswith('; @launch')][0]
    src = '\n'.join(head[:i0]) + '\n; @launch grid=(256,1,1) block=(256,1,1) lds=163840\n'
    src += f'''.amdgcn_target "amdgcn-amd-amdhsa--gfx950"
.text
.globl {NAME}_kernel
.p2align 8
.type {NAME}_kernel,@function
{NAME}_kernel:
''' + '\n'.join(l if l.endswith(':') else '    ' + l for l in body) + f'''
.section .rodata,"a"
.p2align 6
.amdhsa_kernel {NAME}_kernel
  .amdhsa_next_free_vgpr 512
  .amdhsa_next_free_sgpr 102
  .amdhsa_accum_offset 256
  .amdhsa_group_segment_fixed_size 0
  .amdhsa_kernarg_size 104
  .amdhsa_user_sgpr_count 2
  .amdhsa_user_sgpr_kernarg_segment_ptr 1
  .amdhsa_system_sgpr_workgroup_id_x 1
.end_amdhsa_kernel
'''
    return src, stamps
if __name__ == '__main__':
    out = sys.argv[1] if len(sys.argv) > 1 else f'cdna_kernels/{NAME}.s'
    opt = {}
    for kv in sys.argv[2:]:
        k, x = kv.split('='); opt[k] = int(x)
    src, stamps = gen(opt)
    open(out, 'w').write(src)
    if stamps: open(out + '.stamps', 'w').write(' '.join(stamps))
```
